```python
import torch

def _softmax(x, axis=-1):
    return torch.softmax(x, dim=axis)
def _gelu(x):
    return torch.nn.functional.gelu(x, approximate="tanh")
def _silu(x):
    return torch.nn.functional.silu(x)
def _sigmoid(x):
    return torch.sigmoid(x)
def _layernorm(x, axis=-1, eps=1e-5):
    m = x.mean(dim=axis, keepdim=True)
    v = x.var(dim=axis, keepdim=True, unbiased=False)
    return (x - m) / torch.sqrt(v + eps)
def _scatter_add(tgt, idx, src, axis=0):
    return tgt.clone().index_add_(axis, idx, src)
def _segment_sum(src, seg, n):
    out = torch.zeros((n,) + src.shape[1:], dtype=src.dtype)
    return out.index_add_(0, seg, src)
def _pad(x, pw):
    flat = tuple(v for pair in reversed(pw) for v in pair)
    return torch.nn.functional.pad(x, flat)

kernel_name = 'recurrent_scan__sliding_block__glu_gated_bilinear__prompt'

def setup_inputs():

    _w = (lambda a: (lambda t: t.to(torch.bfloat16) if t.is_floating_point() else t)(torch.as_tensor(a)))
    def _A_setup():
        B, S, D = 1, 2048, 1024
        return {
            "x": _w((lambda *s: torch.randn(*s, dtype=torch.bfloat16) * 0.05)(B, S, D)),
            "wqkv": _w((lambda *s: torch.randn(*s, dtype=torch.bfloat16) * 0.2)(D, 3 * D)),
            "wo": _w((lambda *s: torch.randn(*s, dtype=torch.bfloat16) * 0.2)(D, D)),
        }
    _A_in = _A_setup()

    def _B_setup():
        B, S, D, F = 1, 2048, 1024, 3584
        return {
            "x": _w((lambda *s: torch.randn(*s, dtype=torch.bfloat16) * 0.05)(B, S, D)),
            "w_gate": _w((lambda *s: torch.randn(*s, dtype=torch.bfloat16) * 0.1)(D, F) * (D ** -0.5)),
            "w_up": _w((lambda *s: torch.randn(*s, dtype=torch.bfloat16) * 0.1)(D, F) * (D ** -0.5)),
            "w_down": _w((lambda *s: torch.randn(*s, dtype=torch.bfloat16) * 0.1)(F, D) * (F ** -0.5)),
        }
    _B_in = _B_setup()

    return {
        "A_x": _A_in["x"],
        "A_wqkv": _A_in["wqkv"],
        "A_wo": _A_in["wo"],
        "B_x": _B_in["x"],
        "B_w_gate": _B_in["w_gate"],
        "B_w_up": _B_in["w_up"],
        "B_w_down": _B_in["w_down"],
    }

def reference(A_x, A_wqkv, A_wo, B_x, B_w_gate, B_w_up, B_w_down):
    def _A_ref(x, wqkv, wo):
        B, S, D = x.shape
        H = 32; Dh = D // H; W = 256
        qkv = (lambda x, *d: x.permute(*d))((x @ wqkv).reshape(B, S, 3, H, Dh), 2, 0, 3, 1, 4)
        q, k, v = qkv[0], qkv[1], qkv[2]
        scores = torch.einsum("bhqd,bhkd->bhqk", q, k) * (Dh ** -0.5)
        idx = torch.arange(S)
        mask = (idx[:, None] - idx[None, :] >= 0) & (idx[:, None] - idx[None, :] < W)
        scores = torch.where(mask[None, None], scores, -1e9)
        p = _softmax(scores, axis=-1)
        o = torch.einsum("bhqk,bhkd->bhqd", p, v)
        return (lambda x, *d: x.permute(*d))(o, 0, 2, 1, 3).reshape(B, S, D) @ wo

    def _B_ref(x, w_gate, w_up, w_down):
        g = torch.einsum("bsd,df->bsf", x, w_gate)
        u = torch.einsum("bsd,df->bsf", x, w_up)
        h = g * u
        return torch.einsum("bsf,fd->bsd", h, w_down)

    x = A_x
    xn = _layernorm(x, axis=-1)
    s = _A_ref(xn, A_wqkv, A_wo)
    g = _silu(_B_ref(xn, B_w_gate, B_w_up, B_w_down))
    return x + s * g
```

```python
from asmlib import *
import json

def kernel(name, shape, iters, fill, nwaves=4, nacc=None):
    b = []; e = b.append
    e("    s_load_dwordx2 s[4:5], s[0:1], 0")
    e("    s_load_dwordx2 s[6:7], s[0:1], 8")
    e("    v_lshrrev_b32 v2, 6, v0")
    e("    v_lshlrev_b32 v1, 4, v0")
    e("    v_and_b32 v0, 63, v0")
    e("    s_nop 0")
    e("    v_readfirstlane_b32 s20, v2")
    e("    s_waitcnt lgkmcnt(0)")
    for i in range(18):
        e(f"    global_load_dwordx4 v[{64+4*i}:{67+4*i}], v1, s[4:5] offset:{(i%4)*1024}")
        if i % 4 == 3: e("    v_add_u32 v1, 4096, v1")
    for r in range(256): e(f"    v_accvgpr_write_b32 a{r}, 0")
    for r in range(16): e(f"    v_mov_b32 v{200+r}, 1.0")
    e("    s_waitcnt vmcnt(0)")
    e("    s_mov_b32 s8, s4\n    s_mov_b32 s9, s5\n    s_mov_b32 s10, 0x200000\n    s_mov_b32 s11, 0x20000")
    e("    s_lshl_b32 s3, s20, 12\n    s_lshl_b32 s21, s2, 11\n    s_and_b32 s21, s21, 0xfffff\n    s_add_u32 s3, s3, s21\n    s_lshl_b32 s21, s20, 12\n    s_add_u32 m0, s21, 32768")
    e("    v_lshlrev_b32 v1, 4, v0")
    e("    v_lshlrev_b32 v2, 3, v0")
    e(f"    s_mov_b32 s21, {iters}")
    e("    s_barrier")
    e("    s_memtime s[30:31]")
    e("    s_memrealtime s[40:41]")
    e("    s_waitcnt lgkmcnt(0)")
    e("L_loop:")
    n = 0
    if shape == 16:
        for c in range(8):
            for r in range(8):
                t = c*8 + r
                e(f"    v_mfma_f32_16x16x32_bf16 a[{4*t}:{4*t+3}], v[{64+4*r}:{67+4*r}], v[{96+4*c}:{99+4*c}], a[{4*t}:{4*t+3}]")
                for f in fill(n): e("    " + f)
                n += 1
    else:
        for kk in range(2):
          for c in range(4):
            for r in range(4):
                t = c*4 + r
                e(f"    v_mfma_f32_32x32x16_bf16 a[{16*t}:{16*t+15}], v[{64+4*(r+4*kk)}:{67+4*(r+4*kk)}], v[{96+4*(c+4*kk)}:{99+4*(c+4*kk)}], a[{16*t}:{16*t+15}]")
                for f in fill(n): e("    " + f)
                n += 1
    e("    s_sub_u32 s21, s21, 1")
    e("    s_cmp_lg_u32 s21, 0")
    e("    s_cbranch_scc1 L_loop")
    e("    s_memtime s[32:33]")
    e("    s_memrealtime s[42:43]")
    e("    s_waitcnt lgkmcnt(0)")
    e("    s_sub_u32 s32, s32, s30")
    e("    s_sub_u32 s42, s42, s40")
    e("    v_mov_b32 v4, s32")
    e("    v_mov_b32 v5, s42")
    e(f"    s_lshl_b32 s34, s2, 3")
    e("    s_add_u32 s34, s34, s20")
    e("    s_lshl_b32 s34, s34, 3")
    e("    v_mov_b32 v3, s34")
    e("    v_cmp_eq_u32 vcc, 0, v0")
    e("    s_and_saveexec_b64 s[36:37], vcc")
    e("    global_store_dwordx2 v3, v[4:5], s[6:7]")
    e("    s_waitcnt vmcnt(0)")
    return K(name, "\n".join(b), nptr=2, vgpr=256, agpr=256, wg=64*nwaves)

none = lambda n: []
def rep(ins, k, every=1):
    return lambda n: ([ins.format(r=200+(n*k+j)%16, q=200+2*((n*k+j)%8)) for j in range(k)] if n % every == 0 else [])
ks = []
def add(nm, *a, **kw): ks.append(kernel(nm, *a, **kw))

def seq(*ins, every=1):
    return lambda n: ([x.format(r=200+(n*len(ins)+j)%16, d=136+4*((n+j)%8), d2=136+2*((n+j)%16), o=(n%32)*1024, o2=(n%16)*512) for j, x in enumerate(ins)] if n % every == 0 else [])
SA = "s_add_u32 s50, s50, 1"
VF = "v_fma_f32 v{r}, v{r}, v{r}, v{r}"
DS = "ds_read_b128 v[{d}:{d}+3], v1 offset:{o}"
TR = "ds_read_b64_tr_b16 v[{d2}:{d2}+1], v2 offset:{o2}"
WT = "s_waitcnt lgkmcnt(8)"

LAST = [63]
DMA = "buffer_load_dwordx4 v1, s[8:11], s3 offen offset:{o3} lds"
def seqd(every, extra=(), pos=0, wait=True):
    def f(n):
        r = []
        if n % every == pos:
            r += [DMA.format(o3=(n // every % 4) * 1024)]
        if n == LAST[0] and wait: r += ["s_waitcnt vmcnt(12)", "s_add_u32 s3, s3, 16384", "s_and_b32 s3, s3, 0xfffff"]
        for (ev, ins) in extra:
            if n % ev == (ev // 2): r += [ins.format(d=136+4*((n)%8), d2=136+2*((n)%16), o=(n%32)*1024, o2=(n%16)*512)]
        return r
    return f
add("m16_400", 16, 400, none)
add("m16_dma16", 16, 400, seqd(16))
add("m16_dma8", 16, 400, seqd(8))
add("m16_dma4", 16, 400, seqd(4))
add("m16_dma2", 16, 400, seqd(2))
add("m16_dma8r", 16, 400, seqd(8, extra=[(4, DS), (4, TR)]))
add("m16_dma4r", 16, 400, seqd(4, extra=[(2, TR), (4, DS)]))
LAST[0] = 31
add("m32_dma4", 32, 400, seqd(4))
add("m32_dma2", 32, 400, seqd(2))
assemble(build_text(ks), "mfma")
json.dump([k.name for k in ks], open("mfma_names.json", "w"))
```

```python
from asmlib import *
import json
def kernel(name, pitch, nrows, iters):
    b = []; e = b.append
    e("    s_load_dwordx2 s[4:5], s[0:1], 0")
    e("    s_load_dwordx2 s[6:7], s[0:1], 8")
    e("    v_lshrrev_b32 v2, 6, v0")
    e("    v_and_b32 v0, 63, v0")
    e("    s_nop 0")
    e("    v_readfirstlane_b32 s20, v2")
    e("    v_lshrrev_b32 v5, 3, v0")
    e(f"    v_mul_u32_u24 v5, {pitch}, v5")
    e("    v_and_b32 v6, 7, v0")
    e("    v_lshl_add_u32 v1, v6, 4, v5")
    e("    s_waitcnt lgkmcnt(0)")
    e("    s_mov_b32 s8, s4\n    s_mov_b32 s9, s5\n    s_mov_b32 s10, 0x10000000\n    s_mov_b32 s11, 0x00020000")
    e("    s_lshr_b32 s23, s2, 3\n    s_and_b32 s23, s23, 15\n    s_lshl_b32 s23, s23, 7")
    e(f"    s_mul_i32 s24, s20, {8*8*pitch}")
    e("    s_add_u32 s23, s23, s24")
    e(f"    s_lshl_b32 s25, s20, 15")
    e("    s_mov_b32 s26, 0")
    e(f"    s_mov_b32 s21, {iters}")
    e("    s_barrier")
    e("    s_memrealtime s[30:31]")
    e("    s_waitcnt lgkmcnt(0)")
    e("L_loop:")
    e("    s_add_u32 s27, s23, s26")
    for i in range(8):
        e(f"    s_add_u32 m0, s25, {i*1024}")
        e(f"    s_add_u32 s28, s27, {i*8*pitch}")
        e(f"    buffer_load_dwordx4 v1, s[8:11], s28 offen lds")
    e(f"    s_add_u32 s26, s26, {256*pitch}")
    e(f"    s_cmp_ge_u32 s26, {nrows*pitch}")
    e("    s_cselect_b32 s26, 0, s26")
    e(f"    s_xor_b32 s25, s25, 8192")
    e(f"    s_waitcnt vmcnt(16)")
    e("    s_sub_u32 s21, s21, 1")
    e("    s_cmp_lg_u32 s21, 0")
    e("    s_cbranch_scc1 L_loop")
    e("    s_waitcnt vmcnt(0)")
    e("    s_memrealtime s[32:33]")
    e("    s_waitcnt lgkmcnt(0)")
    e("    s_sub_u32 s32, s32, s30")
    e("    v_mov_b32 v3, s32")
    e(f"    s_lshl_b32 s34, s2, 3")
    e("    s_add_u32 s34, s34, s20")
    e("    s_lshl_b32 s34, s34, 2")
    e("    v_mov_b32 v4, s34")
    e("    v_cmp_eq_u32 vcc, 0, v0")
    e("    s_and_saveexec_b64 s[36:37], vcc")
    e("    global_store_dword v4, v3, s[6:7]")
    e("    s_waitcnt vmcnt(0)")
    return K(name, "\n".join(b), nptr=2, vgpr=16, wg=256)
ks = [kernel("col_l2", 2048, 1024, 64), kernel("col_mall", 2048, 4096, 64)]
assemble(build_text(ks), "col")
```

```python
from asmlib import *
import json
def kernel(name, voff_code, instr_stride, wave_stride, it_stride, wg_expr, depth, iters, per_iter=8, nw=4):
    b = []; e = b.append
    e("    s_load_dwordx2 s[4:5], s[0:1], 0")
    e("    s_load_dwordx2 s[6:7], s[0:1], 8")
    e("    v_lshrrev_b32 v2, 6, v0")
    e("    v_and_b32 v0, 63, v0")
    e("    s_nop 0")
    e("    v_readfirstlane_b32 s20, v2")
    e(voff_code)
    e("    s_waitcnt lgkmcnt(0)")
    e("    s_mov_b32 s8, s4\n    s_mov_b32 s9, s5\n    s_mov_b32 s10, 0x10000000\n    s_mov_b32 s11, 0x00020000")
    e(wg_expr)
    e(f"    s_mul_i32 s24, s20, {wave_stride}")
    e("    s_add_u32 s23, s23, s24")
    e(f"    s_lshl_b32 s25, s20, 14")
    e(f"    s_mov_b32 s21, {iters}")
    e("    s_barrier")
    e("    s_memrealtime s[30:31]")
    e("    s_waitcnt lgkmcnt(0)")
    e("L_loop:")
    for i in range(per_iter):
        e(f"    s_add_u32 m0, s25, {i*1024}")
        e(f"    s_add_u32 s28, s23, {i*instr_stride}")
        e(f"    buffer_load_dwordx4 v1, s[8:11], s28 offen lds")
    e(f"    s_add_u32 s23, s23, {it_stride}")
    e(f"    s_xor_b32 s25, s25, {per_iter*1024}")
    e(f"    s_waitcnt vmcnt({depth})")
    e("    s_sub_u32 s21, s21, 1")
    e("    s_cmp_lg_u32 s21, 0")
    e("    s_cbranch_scc1 L_loop")
    e("    s_waitcnt vmcnt(0)")
    e("    s_memrealtime s[32:33]")
    e("    s_waitcnt lgkmcnt(0)")
    e("    s_sub_u32 s32, s32, s30")
    e("    v_mov_b32 v3, s32")
    e(f"    s_lshl_b32 s34, s2, 4")
    e("    s_add_u32 s34, s34, s20")
    e("    s_lshl_b32 s34, s34, 2")
    e("    v_mov_b32 v4, s34")
    e("    v_cmp_eq_u32 vcc, 0, v0")
    e("    s_and_saveexec_b64 s[36:37], vcc")
    e("    global_store_dword v4, v3, s[6:7]")
    e("    s_waitcnt vmcnt(0)")
    return K(name, "\n".join(b), nptr=2, vgpr=16, wg=64*nw)
lin = "    v_lshlrev_b32 v1, 4, v0"
ks = []
sh32 = "    s_and_b32 s23, s2, 7\n    s_lshl_b32 s23, s23, 19"
sh8 = "    s_and_b32 s23, s2, 7\n    s_lshl_b32 s23, s23, 2\n    s_lshr_b32 s24, s2, 6\n    s_add_u32 s23, s23, s24\n    s_lshl_b32 s23, s23, 19"
for nw in (1, 2, 4, 8):
    it = 64 // nw
    for nm, ex in (("sh32", sh32), ("sh8", sh8)):
        ks.append(kernel(f"cold_{nm}_w{nw}", lin, 1024, 8192, 8192*nw, ex, 8, it, nw=nw))
assemble(build_text(ks), "cold")
json.dump([k.name for k in ks], open("cold_names.json", "w"))
```
